```python
import torch

def _softmax(x, axis=-1):
    return torch.softmax(x, dim=axis)
def _gelu(x):
    return torch.nn.functional.gelu(x, approximate="tanh")
def _silu(x):
    return torch.nn.functional.silu(x)
def _sigmoid(x):
    return torch.sigmoid(x)
def _layernorm(x, axis=-1, eps=1e-5):
    m = x.mean(dim=axis, keepdim=True)
    v = x.var(dim=axis, keepdim=True, unbiased=False)
    return (x - m) / torch.sqrt(v + eps)
def _scatter_add(tgt, idx, src, axis=0):
    return tgt.clone().index_add_(axis, idx, src)
def _segment_sum(src, seg, n):
    out = torch.zeros((n,) + src.shape[1:], dtype=src.dtype)
    return out.index_add_(0, seg, src)
def _pad(x, pw):
    flat = tuple(v for pair in reversed(pw) for v in pair)
    return torch.nn.functional.pad(x, flat)

kernel_name = 'interleave_layers__gqa_block_cached__glu_gated_reglu__decode'

def setup_inputs():

    _w = (lambda a: (lambda t: t.to(torch.bfloat16) if t.is_floating_point() else t)(torch.as_tensor(a)))
    def _A_setup():
        B, Sq, D = 4, 1, 512
        Hq, Hkv, Sk, Dh = 32, 8, 8192, 128
        assert Hq % Hkv == 0, (Hq, Hkv)
        return {
            "x": _w((lambda *s: torch.randn(*s, dtype=torch.bfloat16) * 0.05)(B, Sq, D)),
            "k_cache": _w((lambda *s: torch.randn(*s, dtype=torch.bfloat16) * 1.6)(B, Hkv, Sk, Dh)),
            "v_cache": _w((lambda *s: torch.randn(*s, dtype=torch.bfloat16) * 0.8)(B, Hkv, Sk, Dh)),
            "wq": _w((lambda *s: torch.randn(*s, dtype=torch.bfloat16) * 1.6)(D, Hq * Dh) * (D ** -0.5)),
            "wo": _w((lambda *s: torch.randn(*s, dtype=torch.bfloat16) * 0.8)(Hq * Dh, D) * ((Hq * Dh) ** -0.5)),
        }
    _A_in = _A_setup()

    def _B_setup():
        B, S, D, F = 4, 1, 512, 1792
        return {
            "x": _w((lambda *s: torch.randn(*s, dtype=torch.bfloat16) * 0.05)(B, S, D)),
            "W_gate": _w((lambda *s: torch.randn(*s, dtype=torch.bfloat16) * 0.4)(D, F) * (2.0 / D) ** 0.5),
            "W_up": _w((lambda *s: torch.randn(*s, dtype=torch.bfloat16) * 0.4)(D, F) * (2.0 / D) ** 0.5),
            "W_down": _w((lambda *s: torch.randn(*s, dtype=torch.bfloat16) * 0.4)(F, D) * (1.0 / F) ** 0.5),
        }
    _B_in = _B_setup()

    return {
        "A_x": _A_in["x"],
        "A_k_cache": _A_in["k_cache"],
        "A_v_cache": _A_in["v_cache"],
        "A_wq": _A_in["wq"],
        "A_wo": _A_in["wo"],
        "B_x": _B_in["x"],
        "B_W_gate": _B_in["W_gate"],
        "B_W_up": _B_in["W_up"],
        "B_W_down": _B_in["W_down"],
    }

def reference(A_x, A_k_cache, A_v_cache, A_wq, A_wo, B_x, B_W_gate, B_W_up, B_W_down):
    def _A_ref(x, k_cache, v_cache, wq, wo):
        B, Sq, D = x.shape
        Hq, Dh = 32, 128
        Hkv = k_cache.shape[1]
        rep = Hq // Hkv
        q = (lambda x, *d: x.permute(*d))((x @ wq).reshape(B, Sq, Hq, Dh), 0, 2, 1, 3)
        k = (lambda x, n, axis: torch.repeat_interleave(x, n, dim=axis))(k_cache, rep, axis=1)
        v = (lambda x, n, axis: torch.repeat_interleave(x, n, dim=axis))(v_cache, rep, axis=1)
        scores = torch.einsum("bhqd,bhkd->bhqk", q, k) * (Dh ** -0.5)
        p = _softmax(scores, axis=-1)
        o = torch.einsum("bhqk,bhkd->bhqd", p, v)
        return (lambda x, *d: x.permute(*d))(o, 0, 2, 1, 3).reshape(B, Sq, Hq * Dh) @ wo

    def _B_ref(x, W_gate, W_up, W_down):
        gate = torch.einsum("bsd,df->bsf", x, W_gate)
        up = torch.einsum("bsd,df->bsf", x, W_up)
        gate = gate * (lambda x, dt: x.to(dt))(gate > 0, gate.dtype)
        h = gate * up
        return torch.einsum("bsf,fd->bsd", h, W_down)

    x = A_x
    x = x + _A_ref(_layernorm(x, axis=-1), A_k_cache, A_v_cache, A_wq, A_wo)
    x = x + _B_ref(_layernorm(x, axis=-1), B_W_gate, B_W_up, B_W_down)
    x = x + _A_ref(_layernorm(x, axis=-1), A_k_cache, A_v_cache, A_wq, A_wo)
    x = x + _B_ref(_layernorm(x, axis=-1), B_W_gate, B_W_up, B_W_down)
    return x
```

```python
import re

TRANS = ("v_exp_f32", "v_log_f32", "v_rcp_f32", "v_rsq_f32", "v_sqrt_f32", "v_sin_f32", "v_cos_f32")

def regs_of(tok):
    tok = tok.strip()
    neg = tok.lstrip("-")
    m = re.fullmatch(r"(?:abs\()?\|?([vas])(\d+)\|?\)?", neg)
    if m:
        return {(m.group(1), int(m.group(2)))}
    m = re.fullmatch(r"([vas])\[(\d+):(\d+)\]", neg)
    if m:
        return {(m.group(1), i) for i in range(int(m.group(2)), int(m.group(3)) + 1)}
    if neg == "vcc":
        return {("s", "vcc")}
    if neg == "exec":
        return {("s", "exec")}
    if neg == "m0":
        return {("s", "m0")}
    return set()

class Ins:
    def __init__(self, text):
        self.text = text
        t = text.split(";")[0].strip()
        t = re.sub(r"quad_perm:\[(\d),(\d),(\d),(\d)\]", r"quad_perm:\1\2\3\4", t)
        t = re.sub(r"hwreg\([^)]*\)", "hwreg", t)
        parts = t.split(None, 1)
        self.op = parts[0]
        rest = parts[1] if len(parts) > 1 else ""
        ops = [x.strip() for x in rest.split(",")] if rest else []
        mods = []
        if ops:
            l = ops[-1].split()
            ops[-1] = l[0] if l else ""
            mods = l[1:]
        self.ops, self.mods = ops, mods
        op = self.op
        self.mfma = op.startswith("v_mfma")
        self.valu = op.startswith("v_") and not self.mfma
        self.trans = any(op.startswith(x) for x in TRANS)
        self.vmem = op.startswith("buffer_") or op.startswith("global_")
        self.ds = op.startswith("ds_")
        self.salu = op.startswith("s_")
        self.dpp = op.endswith("_dpp") or any(x.startswith(("row_", "quad_perm", "wave_")) for x in mods)
        self.permlane = op.startswith("v_permlane")
        self.readlane = op.startswith(("v_readlane", "v_readfirstlane"))
        self.lds_dma = self.vmem and ("lds" in mods or "_lds_" in op)
        R = [regs_of(x) for x in ops]
        self.defs, self.uses = set(), set()
        self.srcC = set(); self.srcAB = set()
        self.wide_store = set()
        if self.mfma:
            self.defs = R[0]; self.srcAB = R[1] | R[2]; self.srcC = R[3]; self.uses = self.srcAB | self.srcC
        elif self.valu:
            self.defs = set(R[0])
            for r in R[1:]:
                self.uses |= r
            if self.permlane:
                self.defs |= R[1]; self.uses |= R[0]
            if op.startswith(("v_fmac", "v_writelane", "v_pk_fmac", "v_dot2c")) or self.dpp:
                self.uses |= R[0]
            if op.startswith("v_cndmask") and len(ops) == 3:
                self.uses |= {("s", "vcc")}
        elif self.vmem:
            is_store = "store" in op or "atomic" in op
            if is_store or self.lds_dma:
                for r in R:
                    self.uses |= r
                if "atomic" in op and "sc0" in mods:
                    self.defs = set(R[0])
                if "store" in op and ("x4" in op or "x3" in op):
                    self.wide_store = R[0] if op.startswith("buffer_") else R[1]
            else:
                self.defs = set(R[0])
                for r in R[1:]:
                    self.uses |= r
            if self.lds_dma:
                self.uses |= {("s", "m0")}
        elif self.ds:
            if op.startswith("ds_read") or op.startswith("ds_bperm") or op.startswith("ds_swiz"):
                self.defs = set(R[0])
                for r in R[1:]:
                    self.uses |= r
            else:
                for r in R:
                    self.uses |= r
        elif self.salu:
            if op.startswith(("s_cmp", "s_cbranch", "s_branch", "s_waitcnt", "s_barrier", "s_nop", "s_sleep", "s_endpgm", "s_setprio", "s_bitcmp", "s_setpc")):
                for r in R:
                    self.uses |= r
            else:
                if R:
                    self.defs = set(R[0])
                for r in R[1:]:
                    self.uses |= r
        self.states = 1
        if op == "s_nop":
            self.states = int(ops[0], 0) + 1

def vg(s):
    return {r for r in s if r[0] in "va"}
def sg(s):
    return {r for r in s if r[0] == "s"}

def need(p, c):
    n = 0
    if p.valu:
        pv = vg(p.defs); ps = sg(p.defs)
        if c.mfma and pv & c.uses: n = max(n, 2)
        if c.valu and c.dpp and pv & c.uses: n = max(n, 2)
        if c.permlane and pv & c.uses: n = max(n, 2)
        if c.readlane and pv & c.uses: n = max(n, 1)
        if p.trans and c.valu and not c.trans and pv & c.uses: n = max(n, 1)
        if p.trans and (c.vmem or c.ds) and pv & c.uses: n = max(n, 1)
        if c.valu and ps & c.uses: n = max(n, 4 if (c.readlane or c.op.startswith("v_writelane")) else 2)
        if c.vmem and ps & c.uses: n = max(n, 5)
        if c.salu and ps & c.uses: n = max(n, 1)
    if p.mfma:
        d = p.defs
        if c.mfma:
            if d & c.srcAB: n = max(n, 8)
            if d & c.srcC and d != c.srcC: n = max(n, 6)
            if d & c.defs and d != c.srcC: n = max(n, 6)
        elif c.valu or c.vmem or c.ds:
            if d & (c.uses | c.defs): n = max(n, 8)
        if c.valu and p.srcC & c.defs: n = max(n, 3)
    if p.salu and ("s", "m0") in p.defs and c.lds_dma: n = max(n, 1)
    if p.wide_store and (c.valu or c.mfma) and p.wide_store & c.defs: n = max(n, 2)
    if p.wide_store and (c.vmem or c.ds) and p.wide_store & c.defs: n = max(n, 1)
    return n

class Asm:
    def __init__(self):
        self.items = []
        self._n = 0
    def __call__(self, s):
        for l in s.split("\n"):
            l = l.strip()
            if not l: continue
            if l.startswith(";"):
                self.items.append(("c", l))
            elif l.startswith("."):
                self.items.append(("d", l))
            elif l.endswith(":"):
                self.items.append(("l", l[:-1]))
            else:
                self.items.append(("i", l))
    def label(self, name):
        self.items.append(("l", name))
    def uniq(self, base):
        self._n += 1
        return f"{base}_{self._n}"
    def finish(self):
        out = []
        def required(window, ins):
            dist = 0; req = 0
            for p in reversed(window):
                r = need(p, ins) - dist
                req = max(req, r)
                dist += p.states
                if dist > 12: break
            return req
        window = []
        for kind, t in self.items:
            if kind != "i":
                out.append((kind, t, None)); continue
            ins = Ins(t)
            r = required(window, ins)
            if r > 0:
                nop = Ins(f"s_nop {r-1}")
                out.append(("i", nop.text, nop)); window.append(nop)
            out.append(("i", t, ins)); window.append(ins)
            if ins.op in ("s_branch", "s_endpgm", "s_setpc_b64"):
                window = []
            window = window[-14:]
        changed = True
        while changed:
            changed = False
            labpos = {t: i for i, (k, t, _) in enumerate(out) if k == "l"}
            for i, (k, t, ins) in enumerate(out):
                if k == "i" and ins.op.startswith(("s_cbranch", "s_branch")) and ins.ops[0] in labpos:
                    win = []
                    for (k2, _, x) in reversed(out[:i + 1]):
                        if k2 == "i":
                            if win and x.op in ("s_branch", "s_endpgm", "s_setpc_b64"): break
                            win.insert(0, x)
                            if len(win) >= 14: break
                    j = labpos[ins.ops[0]]
                    cnt = 0
                    for jj in range(j + 1, len(out)):
                        if out[jj][0] != "i": continue
                        x = out[jj][2]
                        r = required(win, x)
                        if r > 0:
                            nop = Ins(f"s_nop {r-1}")
                            out.insert(j + 1, ("i", nop.text, nop))
                            changed = True
                            break
                        win.append(x); cnt += x.states
                        if cnt > 12 or x.op in ("s_branch", "s_endpgm", "s_setpc_b64"): break
                    if changed: break
        lines = []
        for k, t, _ in out:
            lines.append(t + ":" if k == "l" else "    " + t)
        return "\n".join(lines) + "\n"

class VM:
    def __init__(self, a):
        self.a = a; self.q = []
    def issue(self, tag):
        self.q.append(tag)
    def younger(self, tag):
        idx = max(i for i, t in enumerate(self.q) if t == tag)
        return len(self.q) - 1 - idx
    def wait(self, tag):
        n = min(63, self.younger(tag))
        self.a(f"s_waitcnt vmcnt({n})")
    def window(self, n):
        self.a(f"s_waitcnt vmcnt({n})")
```

```python
import sys, struct, math
from asmx import Asm, VM

KNAME = "interleave_layers__gqa_block_cached__glu_gated_reglu__decode_kernel"

def f32(x):
    return "0x%08x" % struct.unpack("<I", struct.pack("<f", x))[0]

LB_STRIDE = 0x16000
OP_OFF, ST_OFF, QS1_OFF, XS_OFF, HS_OFF = 0, 0x10000, 0x10800, 0x11800, 0x14800
GY_BASE = 0xB0000
GY3 = GY_BASE + 0x180000
QS0_BASE = 0x240000
DBG_BASE = 0x300000
WS_SIZE = 0x400000
L_WO, L_WD, L_SC = 131072, 147456, 154624
L_MX = L_SC + 8192
L_R1, L_R2, L_R3 = L_SC, L_SC + 2048, L_SC + 4096
sW, sK, sC, sB, sSP, sLB, sLOC, sLAY, sTO = "s3", "s20", "s21", "s22", "s23", "s24", "s25", "s26", "s27"
WS, KS, VS = "s[4:7]", "s[8:11]", "s[12:15]"
WDS, XSR, WQS, WGS, WUS, WOS = "s[16:19]", "s[80:83]", "s[84:87]", "s[88:91]", "s[92:95]", "s[96:99]"
M4 = ["s[28:29]", "s[30:31]", "s[32:33]", "s[34:35]"]
sT0, sT1, sOP, sST, sXS, sHS, sGW, sQS = "s60", "s61", "s62", "s63", "s64", "s65", "s66", "s67"
MEVEN, MH = "s[68:69]", "s[70:71]"
sSC, sINV, sEPS, sGR, sKV, sADD, sT2, sLDS = "s72", "s73", "s74", "s75", "s76", "s77", "s78", "s79"
TOLIM = 400000
MFMA = "v_mfma_f32_16x16x32_bf16"

def v(i, n=1):
    return f"v{i}" if n == 1 else f"v[{i}:{i+n-1}]"
def ar(i, n=4):
    return f"a[{i}:{i+n-1}]"

class Cfg:
    dbg = False
    kvflag = "nt"
    wflag = "nt"
    win = 16
    force_slow = False

class LG:
    def __init__(self, a): self.a = a; self.q = []
    def op(self, text, tag=None):
        self.a(text); self.q.append(tag)
    def wait(self, tag):
        idx = max(i for i, t in enumerate(self.q) if t == tag)
        self.a(f"s_waitcnt lgkmcnt({min(15, len(self.q) - 1 - idx)})")

def gen(cfg):
    a = Asm()
    vm = VM(a)
    slow_stubs = []
    def stamp():
        if not cfg.dbg: return
        a("s_memrealtime s[100:101]")
        a("s_waitcnt lgkmcnt(0)")
        a("v_writelane_b32 v95, s100, m0")
        a("s_add_u32 m0, m0, 1")
    def srd(dst, ptr, size):
        d = int(dst[2:].split(":")[0])
        a(f"s_mov_b32 s{d}, s{ptr}\ns_and_b32 s{d+1}, s{ptr+1}, 0xffff\ns_mov_b32 s{d+2}, {size}\ns_mov_b32 s{d+3}, 0x20000")
    def poll_head(tag):
        a(f"s_branch L_poll_{tag}")
        a.label(f"L_retry_{tag}")
        a(f"s_add_u32 {sTO}, {sTO}, 1")
        a(f"s_cmp_gt_u32 {sTO}, {TOLIM}")
        a("s_cbranch_scc1 L_abort")
        a.label(f"L_poll_{tag}")
    def poll_tail(tag, chk):
        a(f"v_cmp_eq_u32 vcc, -1, {chk}")
        a(f"s_cbranch_vccnz L_retry_{tag}")
    def loc_test():
        a(f"s_cmp_eq_u32 {sLOC}, 1")
    def local_store(instr, tag):
        a(f"s_cbranch_scc0 L_slow_{tag}")
        a(instr)
        a.label(f"L_sd_{tag}")
        slow_stubs.append((tag, instr))
    def chk_list(regs, acc):
        out = []
        regs = list(regs)
        out.append(f"v_max3_u32 {acc}, v{regs[0]}, v{regs[1]}, v{regs[2]}")
        rest = regs[3:]
        while len(rest) >= 2:
            out.append(f"v_max3_u32 {acc}, {acc}, v{rest[0]}, v{rest[1]}")
            rest = rest[2:]
        if rest:
            out.append(f"v_max_u32 {acc}, {acc}, v{rest[0]}")
        return out

    a("s_cmp_ge_u32 s2, 256")
    a("s_cbranch_scc1 L_end")
    a("s_load_dwordx16 s[36:51], s[0:1], 0")
    a("s_load_dwordx8 s[52:59], s[0:1], 64")
    a("v_lshrrev_b32 v1, 6, v0")
    a("v_and_b32 v0, 63, v0")
    a(f"v_readfirstlane_b32 {sW}, v1")
    a(f"s_and_b32 {sK}, s2, 7\ns_lshr_b32 {sC}, s2, 3\ns_lshr_b32 {sB}, {sC}, 3\ns_and_b32 {sSP}, {sC}, 7")
    a(f"s_mul_i32 {sLB}, {sK}, {LB_STRIDE}")
    a(f"s_mov_b32 {sLOC}, 0\ns_mov_b32 {sLAY}, 0\ns_mov_b32 {sTO}, 0")
    for t in range(4):
        m = 0x000F000F << (4 * t)
        d = 28 + 2 * t
        a(f"s_mov_b32 s{d}, {m:#x}\ns_mov_b32 s{d+1}, {m:#x}")
    a("s_mov_b32 s68, 0x55555555\ns_mov_b32 s69, 0x55555555\ns_mov_b32 s70, 0x00550055\ns_mov_b32 s71, 0x00550055")
    a(f"s_mov_b32 {sSC}, {f32(128 ** -0.5 * math.log2(math.e))}\ns_mov_b32 {sINV}, {f32(1/512)}\ns_mov_b32 {sEPS}, {f32(1e-5)}")
    a(f"s_lshl_b32 {sKV}, {sB}, 3\ns_add_u32 {sKV}, {sKV}, {sK}\ns_lshl_b32 {sKV}, {sKV}, 3\ns_add_u32 {sKV}, {sKV}, {sSP}")
    a(f"s_lshl_b32 {sKV}, {sKV}, 2\ns_add_u32 {sKV}, {sKV}, {sW}\ns_lshl_b32 {sKV}, {sKV}, 16")
    a(f"s_lshl_b32 {sLDS}, {sW}, 15")
    a("v_and_b32 v90, 15, v0\nv_lshrrev_b32 v91, 4, v0\nv_lshlrev_b32 v92, 4, v0")
    if cfg.dbg:
        a("v_mov_b32 v95, 0")
        a("s_memrealtime s[100:101]\ns_waitcnt lgkmcnt(0)\nv_writelane_b32 v95, s100, 0")
    a("s_waitcnt lgkmcnt(0)")
    srd(WS, 58, WS_SIZE); srd(KS, 38, 0x4000000); srd(VS, 40, 0x4000000)
    srd(XSR, 36, 4096); srd(WQS, 42, 512 * 4096 * 2); srd(WGS, 48, 512 * 1792 * 2); srd(WUS, 50, 512 * 1792 * 2)
    srd(WOS, 44, 4096 * 512 * 2); srd(WDS, 52, 1792 * 512 * 2)
    a(f"s_getreg_b32 {sT0}, hwreg(HW_REG_XCC_ID, 0, 4)")
    a(f"s_mul_i32 {sT1}, {sT0}, {sT0}\ns_lshl_b32 {sT1}, {sT1}, 15\ns_lshl_b32 {sT0}, {sT0}, 6\ns_add_u32 {sADD}, {sT0}, {sT1}\ns_add_u32 {sADD}, {sADD}, 1")
    a(f"s_cmp_eq_u32 {sW}, 3")
    a("s_cbranch_scc0 L_noclear")
    a("v_mov_b32 v4, -1\nv_mov_b32 v5, -1\nv_mov_b32 v6, -1\nv_mov_b32 v7, -1")
    a(f"s_mul_i32 {sT0}, s2, 9216")
    for i in range(9):
        if i and i % 4 == 0:
            a(f"s_add_u32 {sT0}, {sT0}, 4096")
        a(f"buffer_store_dwordx4 v[4:7], v92, {WS}, {sT0} offen offset:{(i%4)*1024} sc1")
    a("v_lshrrev_b32 v8, 1, v0\nv_lshlrev_b32 v8, 10, v8\nv_and_b32 v9, 1, v0\nv_lshl_add_u32 v8, v9, 4, v8")
    a(f"s_lshl_b32 {sT0}, {sK}, 12\ns_lshl_b32 {sT1}, {sC}, 5\ns_add_u32 {sT0}, {sT0}, {sT1}\ns_add_u32 {sT0}, {sT0}, {QS0_BASE}")
    a("s_mov_b64 exec, 0xff")
    a(f"buffer_store_dwordx4 v[4:7], v8, {WS}, {sT0} offen sc1")
    a("s_mov_b64 exec, 1")
    a(f"s_lshl_b32 {sT0}, {sK}, 5")
    a(f"v_mov_b32 v8, {sT0}\nv_mov_b32 v9, {sADD}")
    a("s_waitcnt vmcnt(0)")
    a("global_atomic_add v8, v9, s[56:57] sc1")
    a("s_mov_b64 exec, -1")
    a.label("L_noclear")

    def xa_addr(dst):
        a(f"v_lshlrev_b32 {dst}, 10, v90\nv_lshl_add_u32 {dst}, v91, 4, {dst}\ns_lshl_b32 {sT0}, {sW}, 8\nv_add_u32 {dst}, {sT0}, {dst}")
    def ones(base):
        for i in range(16):
            a(f"v_mov_b32 v{base+i}, 0x3f803f80")
    def col_addr(dst):
        a(f"v_lshlrev_b32 {dst}, 10, v91\nv_lshl_add_u32 {dst}, v90, 1, {dst}")
    def wt_addr(dst, tmp):
        a(f"v_lshrrev_b32 {dst}, 2, v90\nv_lshl_add_u32 {dst}, v91, 3, {dst}\nv_lshlrev_b32 {dst}, 5, {dst}\nv_and_b32 {tmp}, 3, v90\nv_lshl_add_u32 {dst}, {tmp}, 3, {dst}")
    def ln_addrs():
        a(f"s_lshl_b32 {sT0}, {sW}, 9\ns_add_u32 {sT0}, {sT0}, {L_R1}\nv_add_u32 v26, {sT0}, v92")
        a(f"v_lshlrev_b32 v27, 4, v90\nv_add_u32 v28, {L_R1+256}, v27\nv_lshl_add_u32 v27, v91, 2, v27\nv_add_u32 v27, {L_R1}, v27")
        a(f"v_lshlrev_b32 v29, 2, v91\nv_lshl_add_u32 v30, v91, 4, v29\nv_add_u32 v29, {L_R2+64}, v29\nv_add_u32 v30, {L_R2}, v30")
    def ln_reduce_write():
        a("s_mov_b32 exec_hi, 0")
        a("ds_write_b128 v26, v[32:35]")
        a("ds_write_b128 v26, v[36:39] offset:2048")
        a("s_mov_b32 exec_hi, -1")
        a("s_waitcnt lgkmcnt(0)")
        a("s_barrier")
    def ln_final():
        a("ds_read2st64_b32 v[44:45], v29 offset0:0 offset1:2\nds_read2st64_b32 v[46:47], v29 offset0:4 offset1:6")
        a("ds_read2st64_b32 v[48:49], v30 offset0:0 offset1:2\nds_read2st64_b32 v[50:51], v30 offset0:4 offset1:6")
        a("ds_read2st64_b32 v[52:53], v28 offset0:0 offset1:2\nds_read2st64_b32 v[54:55], v28 offset0:4 offset1:6")
        a("ds_read2st64_b32 v[40:41], v27 offset0:0 offset1:2\nds_read2st64_b32 v[42:43], v27 offset0:4 offset1:6")
        a(f"v_mov_b32 v56, {sEPS}")
        a("s_waitcnt lgkmcnt(6)")
        a("v_add_f32 v44, v44, v45\nv_add_f32 v46, v46, v47")
        a("s_waitcnt lgkmcnt(4)")
        a("v_add_f32 v48, v48, v49\nv_add_f32 v50, v50, v51\nv_add_f32 v44, v44, v46\nv_add_f32 v48, v48, v50")
        a(f"v_mul_f32 v44, {sINV}, v44")
        a(f"v_fmac_f32 v56, {sINV}, v48")
        a("v_fma_f32 v56, -v44, v44, v56")
        a(f"v_max_f32 v56, {sEPS}, v56")
        a("v_rsq_f32 v56, v56")
        a("s_waitcnt lgkmcnt(2)")
        a("v_add_f32 v52, v52, v53\nv_add_f32 v54, v54, v55")
        a("s_waitcnt lgkmcnt(0)")
        a("v_add_f32 v40, v40, v41\nv_add_f32 v42, v42, v43\nv_add_f32 v52, v52, v54\nv_add_f32 v40, v40, v42")
        a("v_fma_f32 v40, -v44, v52, v40")
        a("v_mul_f32 v40, v40, v56")
    def pack_pair(src, dst, tmp):
        a(f"v_mov_b32_dpp {tmp}, {src} quad_perm:[1,0,3,2] row_mask:0xf bank_mask:0xf")
        a(f"v_cvt_pk_bf16_f32 {dst}, {src}, {tmp}")
        a(f"v_min_u32 {dst}, -2, {dst}")

    xa_addr("v2")
    ones(10)
    a(f"s_mov_b64 exec, {M4[0]}")
    for s in range(4):
        a(f"buffer_load_dwordx4 {v(10+4*s,4)}, v2, {XSR}, 0 offen offset:{s*64}"); vm.issue("X")
    a("s_mov_b64 exec, -1")
    col_addr("v3")
    a(f"s_lshl_b32 {sT0}, {sC}, 5")
    a(f"buffer_load_ushort v1, v3, {XSR}, {sT0} offen"); vm.issue("XO")
    a("v_lshrrev_b32 v4, 1, v0\nv_and_b32 v5, 1, v0\nv_lshlrev_b32 v5, 4, v5")
    a("v_lshl_add_u32 v6, v4, 13, v5")
    a("v_lshl_add_u32 v93, v4, 10, v5")
    a(f"s_lshl_b32 {sT0}, {sW}, 20\ns_lshl_b32 {sT1}, {sK}, 10\ns_add_u32 {sT0}, {sT0}, {sT1}\ns_lshl_b32 {sT1}, {sC}, 5\ns_add_u32 {sT0}, {sT0}, {sT1}")
    a(f"s_mov_b32 m0, {sLDS}")
    for i in range(4):
        a(f"buffer_load_dwordx4 v6, {WQS}, {sT0} offen {cfg.wflag} lds"); vm.issue("WQ")
        if i < 3:
            a(f"s_add_u32 m0, m0, 1024\ns_add_u32 {sT0}, {sT0}, {32*8192}")
    a(f"v_mul_u32_u24 v7, 3584, v0")
    a(f"s_min_u32 {sT1}, {sC}, 27\ns_lshl_b32 {sT1}, {sT1}, 4\ns_mul_i32 {sT0}, {sK}, 448\ns_add_u32 {sT0}, {sT0}, {sT1}")
    a(f"s_mul_i32 {sT1}, {sW}, {128*3584}\ns_add_u32 {sT0}, {sT0}, {sT1}\ns_add_u32 {sT1}, {sT0}, {64*3584}")
    for srdn in (WGS, WUS):
        for so in (sT0, sT1):
            a("s_add_u32 m0, m0, 1024")
            a(f"buffer_load_dwordx4 v7, {srdn}, {so} offen {cfg.wflag} lds"); vm.issue("WG")
    a("v_lshlrev_b32 v94, 8, v90\nv_lshl_add_u32 v94, v91, 4, v94")
    a(f"s_mov_b32 {sT2}, {sKV}")
    def kload(T):
        for s in range(4):
            a(f"buffer_load_dwordx4 {ar((T*4+s)*4)}, v94, {KS}, {sT2} offen offset:{s*64} {cfg.kvflag}"); vm.issue(f"K{T}")
        a(f"s_add_u32 {sT2}, {sT2}, 4096")
    for T in range(6):
        kload(T)
    wt_addr("v8", "v9")
    a(f"v_add_u32 v8, {sLDS}, v8")
    ln_addrs()
    vm.wait("WQ")
    for s in range(4):
        a(f"ds_read_b64_tr_b16 {v(96+4*s,2)}, v8 offset:{s*1024}\nds_read_b64_tr_b16 {v(98+4*s,2)}, v8 offset:{s*1024+128}")
    a("v_lshrrev_b32 v31, 2, v90\nv_lshl_add_u32 v31, v91, 3, v31\nv_lshlrev_b32 v31, 4, v31\nv_and_b32 v9, 1, v90\nv_lshl_add_u32 v31, v9, 3, v31")
    a(f"v_bfe_u32 v9, v90, 1, 1\nv_lshl_add_u32 v31, v9, 11, v31\nv_add_u32 v31, {sLDS}, v31")
    a("s_waitcnt lgkmcnt(0)")
    for s in range(4):
        A = v(10+4*s, 4)
        a(f"{MFMA} v[32:35], {A}, {v(96+4*s,4)}, {'0' if s == 0 else 'v[32:35]'}")
        a(f"{MFMA} v[36:39], {A}, {A}, {'0' if s == 0 else 'v[36:39]'}")
    vm.wait("WG")
    for s in range(4):
        a(f"ds_read_b64_tr_b16 {v(112+4*s,2)}, v31 offset:{4096+s*512}\nds_read_b64_tr_b16 {v(114+4*s,2)}, v31 offset:{4096+s*512+64}")
    ln_reduce_write()
    a(f"s_cmp_eq_u32 {sW}, 0")
    a("s_cbranch_scc0 L_q1done")
    ln_final()
    pack_pair("v40", "v41", "v42")
    a(f"s_lshl_b32 {sT0}, {sK}, 12\ns_lshl_b32 {sT1}, {sC}, 5\ns_add_u32 {sT0}, {sT0}, {sT1}\ns_add_u32 {sT0}, {sT0}, {QS0_BASE}")
    a(f"s_mov_b64 exec, {MEVEN}")
    a(f"buffer_store_dword v41, v3, {WS}, {sT0} offen sc1")
    a("s_mov_b64 exec, -1")
    a("v_lshlrev_b32 v1, 16, v1")
    a.label("L_q1done")

    for T in range(6, 16):
        if T % 2 == 0: vm.window(cfg.win)
        kload(T)
    a("v_bfe_u32 v88, v0, 1, 3\nv_lshlrev_b32 v88, 8, v88\nv_lshl_add_u32 v88, v91, 5, v88\nv_and_b32 v89, 1, v0\nv_lshl_add_u32 v88, v89, 4, v88")
    def vdma(u):
        Gp, t0 = u >> 2, u & 3
        for h in range(2):
            T = 8 * Gp + t0 + 4 * h
            slot = T & 7
            a(f"s_add_u32 m0, {sLDS}, {slot*4096}\ns_add_u32 {sT0}, {sKV}, {T*4096}")
            for off in (0, 2048):
                a(f"buffer_load_dwordx4 v88, {VS}, {sT0} offen offset:{off} {cfg.kvflag} lds"); vm.issue(f"U{u}")
            a("s_add_u32 m0, m0, 896")
            for off in (128, 2048 + 128):
                a(f"buffer_load_dwordx4 v88, {VS}, {sT0} offen offset:{off} {cfg.kvflag} lds"); vm.issue(f"U{u}")
    def tr_addr():
        a("v_lshrrev_b32 v2, 2, v90\nv_lshl_add_u32 v2, v91, 2, v2\nv_and_b32 v3, 7, v2\nv_lshrrev_b32 v2, 3, v2\nv_lshlrev_b32 v2, 11, v2\nv_lshl_add_u32 v2, v3, 5, v2")
        a(f"v_and_b32 v3, 3, v90\nv_lshl_add_u32 v2, v3, 3, v2\nv_add_u32 v2, {sLDS}, v2")
    def tr_unit_j(u, j, dst):
        t0 = u & 3
        return [f"ds_read_b64_tr_b16 {v(dst,2)}, v2 offset:{t0*4096+j*256}", f"ds_read_b64_tr_b16 {v(dst+2,2)}, v2 offset:{(t0+4)*4096+j*256}"]
    def q_addr():
        a("v_and_b32 v86, 3, v90\nv_lshlrev_b32 v86, 8, v86\nv_lshl_add_u32 v86, v91, 4, v86")
    def q_loads():
        for s in range(4):
            a(f"buffer_load_dwordx4 {v(10+4*s,4)}, v86, {WS}, {sQS} offen offset:{s*64} sc1")

    vm.window(cfg.win); vdma(0)
    vm.window(cfg.win); vdma(1)
    a("v_and_b32 v87, 7, v0\nv_lshlrev_b32 v87, 5, v87")
    a("global_load_dword v26, v87, s[56:57] sc1"); vm.issue("CNT")
    vm.window(cfg.win + 1); vdma(2)
    vm.window(cfg.win + 1); vdma(3)
    tr_addr()
    q_addr()
    a(f"s_lshl_b32 {sQS}, {sK}, 12\ns_lshl_b32 {sT0}, {sB}, 10\ns_add_u32 {sQS}, {sQS}, {sT0}\ns_add_u32 {sQS}, {sQS}, {QS0_BASE}")
    vm.wait("CNT")
    a("s_branch L_cnt_chk")
    a.label("L_cnt_retry")
    a(f"s_add_u32 {sTO}, {sTO}, 1\ns_cmp_gt_u32 {sTO}, {TOLIM}\ns_cbranch_scc1 L_abort")
    a("s_sleep 8")
    a("global_load_dword v26, v87, s[56:57] sc1\ns_waitcnt vmcnt(0)")
    a.label("L_cnt_chk")
    a("v_and_b32 v27, 63, v26\nv_cmp_ne_u32 vcc, 32, v27\ns_cbranch_vccnz L_cnt_retry")
    a(f"v_readlane_b32 {sT0}, v26, {sK}")
    a(f"s_lshl_b32 {sT1}, {sADD}, 5")
    a(f"s_cmp_eq_u32 {sT0}, {sT1}\ns_cselect_b32 {sLOC}, 1, 0")
    if cfg.force_slow:
        a(f"s_mov_b32 {sLOC}, 0")
    a(f"v_min_u32 v27, 21, v0\nv_lshlrev_b32 v27, 7, v27\ns_mul_i32 {sT0}, {sC}, {22*128}\ns_add_u32 {sT0}, {sT0}, {sLB}")
    a(f"buffer_load_dword v28, v27, {WS}, {sT0} offen sc1"); vm.issue("TOUCH")
    q_loads()
    for s in range(4): vm.issue("Q")
    for u in (0, 1):
        for j in range(8):
            for x in tr_unit_j(u, j, 128 + 32 * u + 4 * j): a(x)
    a("s_waitcnt lgkmcnt(0)")
    vdma(4); vdma(5)
    vm.wait("Q")
    a("s_branch L_q1_chk")
    a.label("L_q1_retry")
    a(f"s_add_u32 {sTO}, {sTO}, 1\ns_cmp_gt_u32 {sTO}, {TOLIM}\ns_cbranch_scc1 L_abort")
    q_loads()
    a("s_waitcnt vmcnt(0)")
    a.label("L_q1_chk")
    for x in chk_list(range(10, 26), "v26"): a(x)
    a("v_cmp_eq_u32 vcc, -1, v26\ns_cbranch_vccnz L_q1_retry")
    for u in (2, 3):
        for j in range(8):
            for x in tr_unit_j(u, j, 128 + 32 * u + 4 * j): a(x)
    a("s_waitcnt lgkmcnt(0)")
    vdma(6); vdma(7)
    a(f"s_lshl_b32 {sT0}, {sK}, 19\ns_lshl_b32 {sT1}, {sW}, 17\ns_add_u32 {sT0}, {sT0}, {sT1}\ns_lshl_b32 {sT1}, {sC}, 5\ns_add_u32 {sT0}, {sT0}, {sT1}")
    a(f"s_lshl_b32 {sT1}, {sW}, 12\ns_add_u32 m0, {sT1}, {L_WO}")
    for i in range(4):
        a(f"buffer_load_dwordx4 v93, {WOS}, {sT0} offen {cfg.wflag} lds"); vm.issue("LATE")
        if i < 3:
            a(f"s_add_u32 m0, m0, 1024\ns_add_u32 {sT0}, {sT0}, {32*1024}")
    for i in range(2):
        a(f"s_lshl_b32 {sT1}, {sW}, 1\ns_add_u32 {sT1}, {sT1}, {i}\ns_min_u32 {sT1}, {sT1}, 6")
        a(f"s_lshl_b32 {sT0}, {sT1}, 10\ns_add_u32 m0, {sT0}, {L_WD}")
        a(f"s_lshl_b32 {sT1}, {sT1}, 15\ns_mul_i32 {sT0}, {sK}, {224*1024}\ns_add_u32 {sT0}, {sT0}, {sT1}\ns_lshl_b32 {sT1}, {sC}, 5\ns_add_u32 {sT0}, {sT0}, {sT1}")
        a(f"buffer_load_dwordx4 v93, {WDS}, {sT0} offen {cfg.wflag} lds"); vm.issue("LATE")
    NU = {u: min(63, vm.younger(f"U{u}")) for u in (4, 5, 6, 7)}
    a(f"s_add_u32 {sOP}, {sLB}, {OP_OFF}\ns_add_u32 {sST}, {sLB}, {ST_OFF}\ns_add_u32 {sXS}, {sLB}, {XS_OFF}\ns_add_u32 {sHS}, {sLB}, {HS_OFF}")
    a(f"s_lshl_b32 {sT0}, {sC}, 14\ns_add_u32 {sT0}, {sT0}, {GY_BASE}")
    a(f"s_lshl_b32 {sT1}, {sK}, 8\ns_add_u32 {sGW}, {sT0}, {sT1}\ns_lshl_b32 {sT1}, {sK}, 11\ns_add_u32 {sGR}, {sT0}, {sT1}")
    if cfg.dbg:
        a("s_mov_b32 m0, 1")

    a.label("L_att")
    stamp()
    lg = LG(a)
    vQ, vQm, vS, vO, vP = 10, 26, 34, 50, 82
    vTb = [10, 14, 18, 22, 34, 38, 42, 46]
    def masked(buf, t, s):
        return [f"v_cndmask_b32 v{vQm+4*buf+i}, 0, v{vQ+4*s+i}, {M4[t]}" for i in range(4)]
    seq = [(t, s) for t in range(4) for s in range(4)]
    for x in masked(0, 0, 0): a(x)
    for idx, (t, s) in enumerate(seq):
        buf = idx & 1
        nxt = masked(buf ^ 1, *seq[idx + 1]) if idx + 1 < len(seq) else []
        for G in range(4):
            first = (t == 0 and s == 0)
            D = v(vS + 4 * G, 4)
            a(f"{MFMA} {D}, {ar(((4*G+t)*4+s)*4)}, {v(vQm+4*buf,4)}, {'0' if first else D}")
            if nxt: a(nxt[G])
            if idx == 0 and G == 0:
                a(f"s_lshl_b32 {sT0}, {sW}, 2\ns_add_u32 {sT0}, {sT0}, {L_MX}")
            if idx == 0 and G == 1:
                a(f"v_add_u32 v3, {sT0}, v92")
            if idx == 1 and G == 0:
                a(f"v_and_b32 v8, 3, v0\nv_lshlrev_b32 v8, 4, v8")
            if idx == 1 and G == 2:
                a(f"v_add_u32 v8, {L_MX}, v8")
            if idx == 15 and G == 0:
                a(f"s_waitcnt vmcnt({NU[4]})")
            if idx == 15:
                for x in tr_unit_j(4, G, vTb[G]): lg.op(x, ("t", 4, G))
    a(f"v_max3_f32 v93, v{vS}, v{vS+1}, v{vS+2}\nv_max3_f32 v94, v{vS+3}, v{vS+4}, v{vS+5}")
    a(f"v_max3_f32 v93, v93, v{vS+6}, v{vS+7}\nv_max3_f32 v94, v94, v{vS+8}, v{vS+9}")
    a(f"v_max3_f32 v93, v93, v{vS+10}, v{vS+11}\nv_max3_f32 v94, v94, v{vS+12}, v{vS+13}")
    a(f"v_max3_f32 v93, v93, v{vS+14}, v{vS+15}\nv_max_f32 v93, v93, v94")
    a("v_max_f32_dpp v93, v93, v93 row_ror:4 row_mask:0xf bank_mask:0xf")
    a("v_max_f32_dpp v93, v93, v93 row_ror:8 row_mask:0xf bank_mask:0xf")
    a("v_mov_b32 v94, v93\nv_permlane16_swap_b32 v93, v94\nv_max_f32 v93, v93, v94")
    a("v_mov_b32 v94, v93\nv_permlane32_swap_b32 v93, v94\nv_max_f32 v93, v93, v94")
    a(f"v_mul_f32 v93, {sSC}, v93")
    def expG(G):
        o = [f"v_fma_f32 v{vS+4*G+r}, v{vS+4*G+r}, {sSC}, -v93" for r in range(4)]
        o += [f"v_exp_f32 v{vS+4*G+r}, v{vS+4*G+r}" for r in range(4)]
        o.append(f"v_cvt_pk_bf16_f32 v{vP+2*G}, v{vS+4*G}, v{vS+4*G+1}")
        o.append(f"v_cvt_pk_bf16_f32 v{vP+2*G+1}, v{vS+4*G+2}, v{vS+4*G+3}")
        return o
    def pfrag(u, buf):
        Gp, t0 = u >> 2, u & 3
        return [f"v_mov_b32_dpp v{vQm+4*buf+i}, v{vP+4*Gp+i} row_shl:{4*t0} row_mask:0xf bank_mask:0xf" for i in range(4)]
    e0, e1, e2, e3 = expG(0), expG(1), expG(2), expG(3)
    for x in e0[:4] + e1[:4] + e0[4:8] + e1[4:8] + e0[8:] + e1[8:]: a(x)
    lsum01 = [f"v_add_f32 v94, v{vS}, v{vS+1}"] + [f"v_add_f32 v94, v94, v{vS+i}" for i in range(2, 8)]
    lsum23 = [f"v_add_f32 v94, v94, v{vS+i}" for i in range(8, 16)]
    lred = ["v_add_f32_dpp v94, v94, v94 row_ror:4 row_mask:0xf bank_mask:0xf",
            "v_add_f32_dpp v94, v94, v94 row_ror:8 row_mask:0xf bank_mask:0xf",
            "v_mov_b32 v9, v94", "v_permlane16_swap_b32 v94, v9", "v_add_f32 v94, v94, v9",
            "v_mov_b32 v9, v94", "v_permlane32_swap_b32 v94, v9", "v_add_f32 v94, v94, v9"]
    order = [0, 1, 4, 2, 5, 3, 6, 7]
    def bop(u, j):
        return v(128 + 32 * u + 4 * j, 4) if u < 4 else v(vTb[j], 4)
    fill = {i: [] for i in range(64)}
    def put(start, lst, per):
        p = start
        for x in lst:
            while len(fill[p]) >= per: p += 1
            fill[p].append(x)
        return p
    def T(u, j): return [("lds", x, ("t", u, j)) for x in tr_unit_j(u, j, vTb[j])]
    mxw = ["s_mov_b64 exec, 0xf", ("lds", "ds_write_b32 v3, v93", "mx"), "s_mov_b64 exec, -1"]
    p = put(0, mxw + pfrag(1, 1) + lsum01 + T(4, 4) + T(4, 5) + e2[:4] + e3[:4], 3)
    p = put(max(p, 8), e2[4:8] + e3[4:8] + e2[8:] + e3[8:] + lsum23 + T(4, 6) + T(4, 7), 4)
    assert p <= 15, p
    pbuf = {1: 1, 2: 0, 5: 1, 3: 0, 6: 1, 7: 0}
    put(16 + 3, pfrag(2, 0), 1)
    put(24 + 3, pfrag(5, 1), 1)
    put(32 + 3, pfrag(3, 0), 1)
    put(40 + 3, pfrag(6, 1), 1)
    put(48 + 3, pfrag(7, 0), 1)
    put(16, lred, 2)
    put(24, [("lds", "ds_read_b128 v[4:7], v8", "mxr")], 3)
    put(32, [("wait", "mxr"), "v_max3_f32 v8, v4, v5, v6", "v_max_f32 v8, v8, v7", "v_sub_f32 v9, v93, v8", "v_exp_f32 v9, v9",
             f"s_lshl_b32 {sT0}, {sW}, 11", f"s_add_u32 {sT0}, {sT0}, {L_SC}",
             "v_lshlrev_b32 v4, 9, v90", "v_lshl_add_u32 v4, v91, 4, v4", f"v_add_u32 v4, {sT0}, v4"], 2)
    put(40, ["s_mov_b64 exec, 0xf", ("lds", "ds_write_b32 v3, v9 offset:64", "fx"), ("lds", "ds_write_b32 v3, v94 offset:128", "fx"), "s_mov_b64 exec, -1",
             f"s_lshl_b32 {sT0}, {sW}, 9", f"s_add_u32 {sT0}, {sT0}, {L_SC}", "v_lshlrev_b32 v5, 3, v0", f"v_add_u32 v5, {sT0}, v5",
             f"s_lshl_b32 {sT0}, {sW}, 4", f"s_add_u32 {sT0}, {sT0}, {L_MX}", f"v_mov_b32 v6, {sT0}",
             f"s_lshl_b32 {sT0}, {sW}, 8", "v_lshlrev_b32 v7, 2, v0", f"v_add_u32 v7, {sT0}, v7"], 4)
    def owrite(j):
        return [f"s_mov_b64 exec, {M4[0]}", ("lds", f"ds_write_b128 v4, {v(vO+4*j,4)} offset:{j*64}", "ow"), "s_mov_b64 exec, -1"]
    for j in range(5):
        fill[56 + j + 3] += owrite(j)
    def emit(x):
        if isinstance(x, tuple):
            if x[0] == "lds": lg.op(x[1], x[2])
            else: lg.wait(x[1])
        else: a(x)
    for pos, u in enumerate(order):
        Gp, t0 = u >> 2, u & 3
        Pf = v(vP + 4 * Gp, 4) if t0 == 0 else v(vQm + 4 * pbuf[u], 4)
        if 4 <= u < 7:
            a(f"s_waitcnt vmcnt({NU[u+1]})")
        if pos == 3:
            lg.wait("mx"); a("s_barrier")
        for j in range(8):
            if u >= 4 and j % 2 == 0:
                lg.wait(("t", u, j + 1))
            D = v(vO + 4 * j, 4)
            a(f"{MFMA} {D}, {bop(u, j)}, {Pf}, {'0' if pos == 0 else D}")
            if 4 <= u < 7:
                for x in T(u + 1, j): emit(x)
            for x in fill[8 * pos + j]: emit(x)
    a(f"s_lshl_b32 {sT0}, {sC}, 10\ns_add_u32 {sT0}, {sT0}, {sOP}")
    a(f"s_lshl_b32 {sT1}, {sB}, 8\ns_lshl_b32 {sT2}, {sW}, 6\ns_add_u32 {sT1}, {sT1}, {sT2}\ns_lshl_b32 {sT2}, {sSP}, 3\ns_add_u32 {sT1}, {sT1}, {sT2}\ns_add_u32 {sT1}, {sT1}, {sST}")
    a(f"s_mov_b64 exec, {M4[0]}")
    for j in range(5, 8):
        a(f"ds_write_b128 v4, {v(vO+4*j,4)} offset:{j*64}")
    a("s_mov_b64 exec, -1")
    a("s_waitcnt lgkmcnt(0)\ns_barrier")
    a("ds_read_b128 v[10:13], v6 offset:64")
    for w in range(4):
        a(f"ds_read_b64 {v(18+2*w,2)}, v5 offset:{w*2048}")
    a("ds_read_b128 v[14:17], v6 offset:128")
    loc_test()
    a("s_waitcnt lgkmcnt(1)")
    a("v_mul_f32 v18, v18, v10\nv_mul_f32 v19, v19, v10\nv_mul_f32 v22, v22, v12\nv_mul_f32 v23, v23, v12")
    a("v_fmac_f32 v18, v20, v11\nv_fmac_f32 v19, v21, v11\nv_fmac_f32 v22, v24, v13\nv_fmac_f32 v23, v25, v13")
    a("v_add_f32 v18, v18, v22\nv_add_f32 v19, v19, v23")
    a("v_cvt_pk_bf16_f32 v18, v18, v19\nv_min_u32 v18, -2, v18")
    local_store(f"buffer_store_dword v18, v7, {WS}, {sT0} offen", "op")
    a("s_waitcnt lgkmcnt(0)")
    a("v_mul_f32 v9, v10, v14\nv_fmac_f32 v9, v11, v15\nv_fmac_f32 v9, v12, v16\nv_fmac_f32 v9, v13, v17")
    a(f"s_lshl_b64 exec, 1, {sW}")
    loc_test()
    local_store(f"buffer_store_dwordx2 v[8:9], off, {WS}, {sT1}", "st")
    a("s_mov_b64 exec, -1")
    stamp()
    a("s_barrier")

    wt_addr("v2", "v3")
    a(f"s_lshl_b32 {sT0}, {sW}, 12\ns_add_u32 {sT0}, {sT0}, {L_WO}\nv_add_u32 v2, {sT0}, v2")
    a("v_lshrrev_b32 v3, 2, v90\nv_lshlrev_b32 v3, 13, v3\nv_and_b32 v4, 3, v90\nv_lshl_add_u32 v3, v4, 10, v3\nv_lshl_add_u32 v3, v91, 4, v3")
    a(f"s_lshl_b32 {sT0}, {sW}, 8\nv_add_u32 v3, {sT0}, v3")
    a(f"s_lshl_b32 {sT1}, {sW}, 6\nv_lshlrev_b32 v4, 8, v91\nv_add_u32 v4, {sT1}, v4")
    a(f"s_add_u32 {sT0}, {sT0}, {L_R3}\nv_lshlrev_b32 v5, 4, v90\nv_add_u32 v6, {L_R3}, v5\nv_lshl_add_u32 v7, v91, 11, v5\nv_lshl_add_u32 v5, v91, 2, v5\nv_add_u32 v5, {sT0}, v5")
    a(f"s_add_u32 {sT2}, {sOP}, 4096")
    a("s_waitcnt vmcnt(0)")
    for s in range(4):
        a(f"ds_read_b64_tr_b16 {v(58+4*s,2)}, v2 offset:{s*1024}\nds_read_b64_tr_b16 {v(60+4*s,2)}, v2 offset:{s*1024+128}")
    poll_head("op")
    for i in range(4):
        a(f"buffer_load_dwordx4 {v(42+4*i,4)}, v4, {WS}, {sST} offen offset:{i*16} sc1")
    for mt in range(2):
        for s in range(4):
            a(f"buffer_load_dwordx4 {v(10+16*mt+4*s,4)}, v3, {WS}, {sOP if mt == 0 else sT2} offen offset:{s*64} sc1")
    a("s_waitcnt vmcnt(8) lgkmcnt(0)")
    cs = chk_list(range(42, 58), "v8")
    a("v_max3_f32 v82, v42, v44, v46\nv_max3_f32 v83, v48, v50, v52\nv_max3_f32 v82, v82, v54, v56\nv_max_f32 v82, v82, v83")
    for x in cs: a(x)
    for s in range(8): a(f"v_sub_f32 v{42+2*s}, v{42+2*s}, v82")
    for s in range(8): a(f"v_exp_f32 v{42+2*s}, v{42+2*s}")
    a("v_mul_f32 v82, v42, v43\nv_mul_f32 v83, v44, v45")
    for s in range(2, 8): a(f"v_fmac_f32 v{82+(s&1)}, v{42+2*s}, v{43+2*s}")
    a("v_add_f32 v82, v82, v83\nv_rcp_f32 v82, v82")
    for i in range(8):
        mt, s = i >> 2, i & 3
        a(f"s_waitcnt vmcnt({7-i})")
        D = v(74 + 4 * mt, 4)
        a(f"{MFMA} {D}, {v(10+4*i,4)}, {v(58+4*s,4)}, {'0' if s == 0 else D}")
        a(f"v_max3_u32 v8, v8, v{10+4*i}, v{11+4*i}\nv_max3_u32 v8, v8, v{12+4*i}, v{13+4*i}")
    poll_tail("op", "v8")
    a("v_mul_f32 v83, v74, v42\nv_mul_f32 v84, v75, v44\nv_fmac_f32 v83, v76, v46\nv_fmac_f32 v84, v77, v48")
    a("v_fmac_f32 v83, v78, v50\nv_fmac_f32 v84, v79, v52\nv_fmac_f32 v83, v80, v54\nv_fmac_f32 v84, v81, v56")
    a("v_add_f32 v83, v83, v84\nv_mul_f32 v83, v83, v82")
    a("ds_write_b32 v5, v83")
    a(f"s_add_u32 {sT2}, {sGW}, 8192")
    a(f"s_cmp_eq_u32 {sW}, 0")
    a("s_waitcnt lgkmcnt(0)\ns_barrier")
    a("s_cbranch_scc0 L_bx1")
    for w in range(4):
        a(f"ds_read_b128 {v(10+4*w,4)}, v6 offset:{w*256}")
    a("s_waitcnt lgkmcnt(2)")
    a("v_pk_add_f32 v[10:11], v[10:11], v[14:15]\nv_pk_add_f32 v[12:13], v[12:13], v[16:17]")
    a("s_waitcnt lgkmcnt(0)")
    a("v_pk_add_f32 v[18:19], v[18:19], v[22:23]\nv_pk_add_f32 v[20:21], v[20:21], v[24:25]")
    a("v_pk_add_f32 v[10:11], v[10:11], v[18:19]\nv_pk_add_f32 v[12:13], v[12:13], v[20:21]")
    a(f"buffer_store_dwordx4 v[10:13], v7, {WS}, {sGW} offen sc1")
    a(f"buffer_store_dwordx4 v[10:13], v7, {WS}, {sT2} offen sc1")
    stamp()

    def gconsume(tag, last):
        a("v_lshlrev_b32 v2, 4, v90\nv_lshl_add_u32 v2, v91, 2, v2")
        col_addr("v3")
        if last:
            srd(XSR, 54, 4096)
            a(f"s_lshl_b32 {sT0}, {sC}, 5")
        else:
            a(f"s_lshl_b32 {sT0}, {sC}, 5\ns_add_u32 {sT0}, {sT0}, {sXS}")
        poll_head(tag)
        for i in range(8):
            a(f"buffer_load_dword v{14+i}, v2, {WS}, {sGR} offen offset:{i*256} sc1")
        a("s_waitcnt vmcnt(4)")
        a("v_max3_u32 v8, v14, v15, v16\nv_add_f32 v22, v14, v15\nv_add_f32 v23, v16, v17\nv_add_f32 v22, v22, v1")
        a("s_waitcnt vmcnt(0)")
        a("v_max3_u32 v8, v8, v17, v18\nv_add_f32 v24, v18, v19\nv_max3_u32 v8, v8, v19, v20\nv_add_f32 v25, v20, v21\nv_max_u32 v8, v8, v21")
        a("v_add_f32 v22, v22, v23\nv_add_f32 v24, v24, v25")
        a("v_cmp_eq_u32 vcc, -1, v8")
        a("v_add_f32 v22, v22, v24")
        a(f"s_cbranch_vccnz L_retry_{tag}")
        if not last: loc_test()
        pack_pair("v22", "v23", "v24")
        a(f"s_mov_b64 exec, {MEVEN}")
        if last:
            a(f"buffer_store_dword v23, v3, {XSR}, {sT0} offen")
        else:
            local_store(f"buffer_store_dword v23, v3, {WS}, {sT0} offen", tag)
            a("s_mov_b64 exec, -1")
            a("v_cvt_pk_bf16_f32 v1, v22, v22\nv_lshlrev_b32 v1, 16, v1")
            a(f"s_add_u32 {sGW}, {sGW}, 0x80000\ns_add_u32 {sGR}, {sGR}, 0x80000")
    gconsume("g1", False)
    stamp()
    a.label("L_bx1")

    def ln_gemv(tag, wbase):
        xa_addr("v2")
        ones(10)
        ln_addrs()
        a("s_barrier")
        poll_head(tag)
        a(f"s_mov_b64 exec, {M4[0]}")
        for s in range(4):
            a(f"buffer_load_dwordx4 {v(10+4*s,4)}, v2, {WS}, {sXS} offen offset:{s*64} sc1")
        a("s_mov_b64 exec, -1")
        for s in range(4):
            A = v(10+4*s, 4)
            a(f"s_waitcnt vmcnt({3-s})")
            a(f"{MFMA} v[32:35], {A}, {v(wbase+4*s,4)}, {'0' if s == 0 else 'v[32:35]'}")
            if s == 0: a("v_max3_u32 v8, v10, v11, v12\nv_max_u32 v8, v8, v13")
            else: a(f"v_max3_u32 v8, v8, v{10+4*s}, v{11+4*s}\nv_max3_u32 v8, v8, v{12+4*s}, v{13+4*s}")
            a(f"{MFMA} v[36:39], {A}, {A}, {'0' if s == 0 else 'v[36:39]'}")
        poll_tail(tag, "v8")
        a(f"s_add_u32 {sXS}, {sXS}, 0x1000")
        a(f"s_cmp_eq_u32 {sW}, 0")
        ln_reduce_write()

    a(f"s_cmp_ge_u32 {sC}, 28")
    a("s_cbranch_scc1 L_nogu")
    ln_gemv("gu", 112)
    a("s_cbranch_scc0 L_bx2")
    a("v_lshlrev_b32 v3, 9, v91\nv_lshl_add_u32 v3, v90, 1, v3")
    a(f"s_lshl_b32 {sT0}, {sC}, 4\ns_add_u32 {sT0}, {sT0}, {sHS}")
    loc_test()
    ln_final()
    a("v_mov_b32_dpp v41, v40 row_shl:8 row_mask:0xf bank_mask:0xf")
    a("v_max_f32 v40, 0, v40")
    a("v_mul_f32 v40, v40, v41")
    pack_pair("v40", "v41", "v42")
    a(f"s_mov_b64 exec, {MH}")
    local_store(f"buffer_store_dword v41, v3, {WS}, {sT0} offen", "h")
    a("s_mov_b64 exec, -1")
    a("s_branch L_down")
    a.label("L_nogu")
    a("s_barrier")
    a(f"s_add_u32 {sXS}, {sXS}, 0x1000")
    a(f"s_cmp_eq_u32 {sW}, 0")
    a("s_cbranch_scc0 L_bx2")
    a.label("L_down")
    stamp()
    wt_addr("v2", "v3")
    a(f"v_add_u32 v2, {L_WD}, v2")
    for s in range(7):
        a(f"ds_read_b64_tr_b16 {v(40+4*s,2)}, v2 offset:{s*1024}\nds_read_b64_tr_b16 {v(42+4*s,2)}, v2 offset:{s*1024+128}")
    a("v_and_b32 v3, 3, v90\nv_lshlrev_b32 v3, 9, v3\nv_lshl_add_u32 v3, v91, 4, v3")
    a("v_lshlrev_b32 v7, 4, v90\nv_lshl_add_u32 v7, v91, 11, v7")
    a(f"s_add_u32 {sT2}, {sGW}, 8192")
    poll_head("dn")
    for s in range(7):
        a(f"buffer_load_dwordx4 {v(10+4*s,4)}, v3, {WS}, {sHS} offen offset:{s*64} sc1")
    a("s_waitcnt lgkmcnt(0)")
    for s in range(7):
        a(f"s_waitcnt vmcnt({6-s})")
        a(f"{MFMA} v[68:71], {v(10+4*s,4)}, {v(40+4*s,4)}, {'0' if s == 0 else 'v[68:71]'}")
        if s == 0: a("v_max3_u32 v8, v10, v11, v12\nv_max_u32 v8, v8, v13")
        else: a(f"v_max3_u32 v8, v8, v{10+4*s}, v{11+4*s}\nv_max3_u32 v8, v8, v{12+4*s}, v{13+4*s}")
    a(f"s_cmp_eq_u32 {sLAY}, 1")
    poll_tail("dn", "v8")
    a("s_cbranch_scc1 L_last")
    a(f"buffer_store_dwordx4 v[68:71], v7, {WS}, {sGW} offen sc1")
    a(f"buffer_store_dwordx4 v[68:71], v7, {WS}, {sT2} offen sc1")
    stamp()
    gconsume("g2", False)
    stamp()
    a.label("L_bx2")
    a(f"s_cmp_eq_u32 {sLAY}, 1")
    a("s_cbranch_scc1 L_fin")
    ln_gemv("wq", 96)
    a("s_cbranch_scc0 L_q2w")
    col_addr("v3")
    a(f"s_lshl_b32 {sT0}, {sC}, 5\ns_add_u32 {sT0}, {sT0}, {sLB}\ns_add_u32 {sT0}, {sT0}, {QS1_OFF}")
    loc_test()
    ln_final()
    pack_pair("v40", "v41", "v42")
    a(f"s_mov_b64 exec, {MEVEN}")
    local_store(f"buffer_store_dword v41, v3, {WS}, {sT0} offen", "q")
    a("s_mov_b64 exec, -1")
    stamp()
    a.label("L_q2w")
    tr_addr()
    q_addr()
    a(f"s_lshl_b32 {sQS}, {sB}, 10\ns_add_u32 {sQS}, {sQS}, {sLB}\ns_add_u32 {sQS}, {sQS}, {QS1_OFF}")
    a(f"s_mov_b32 {sLAY}, 1\ns_add_u32 {sOP}, {sOP}, 0x8000\ns_add_u32 {sST}, {sST}, 0x400\ns_add_u32 {sHS}, {sHS}, 0x800")
    poll_head("q2")
    q_loads()
    a("s_waitcnt vmcnt(0)")
    for x in chk_list(range(10, 26), "v26"): a(x)
    poll_tail("q2", "v26")
    a("s_branch L_att")

    a.label("L_last")
    a(f"s_lshl_b32 {sT0}, {sC}, 11\ns_add_u32 {sGR}, {sT0}, {GY3}\ns_lshl_b32 {sT1}, {sK}, 8\ns_add_u32 {sGW}, {sGR}, {sT1}")
    a("s_mov_b64 exec, 0xffff")
    a(f"buffer_store_dwordx4 v[68:71], v7, {WS}, {sGW} offen sc1")
    a("s_mov_b64 exec, -1")
    stamp()
    a(f"s_and_b32 {sT0}, {sC}, 7\ns_cmp_eq_u32 {sT0}, {sK}")
    a("s_cbranch_scc0 L_fin")
    gconsume("g4", True)
    a("s_mov_b64 exec, -1")
    stamp()
    a.label("L_fin")
    if cfg.dbg:
        a(f"s_lshl_b32 {sT0}, s2, 2\ns_add_u32 {sT0}, {sT0}, {sW}\ns_lshl_b32 {sT0}, {sT0}, 8\ns_add_u32 {sT0}, {sT0}, {DBG_BASE}")
        a(f"v_writelane_b32 v95, {sTO}, 63\nv_writelane_b32 v95, {sLOC}, 62")
        a(f"v_lshlrev_b32 v2, 2, v0\nbuffer_store_dword v95, v2, {WS}, {sT0} offen")
    a.label("L_end")
    a("s_endpgm")
    a.label("L_abort")
    a("s_mov_b64 exec, 1")
    a("v_mov_b32 v2, 4\nv_mov_b32 v3, 1")
    a("global_atomic_add v2, v3, s[56:57] sc1")
    a("s_endpgm")
    for tag, instr in slow_stubs:
        a.label(f"L_slow_{tag}")
        a(instr + " sc1")
        a(f"s_branch L_sd_{tag}")
    body = a.finish()
    hdr = open("interleave_layers__gqa_block_cached__glu_gated_reglu__decode.s.ref").read().split("; Override")[0]
    return f"""{hdr}; @launch grid=(256,1,1) block=(256,1,1) lds=163840
.amdgcn_target "amdgcn-amd-amdhsa--gfx950"
.text
.globl {KNAME}
.p2align 8
.type {KNAME},@function
{KNAME}:
{body}
.section .rodata,"a"
.p2align 6
.amdhsa_kernel {KNAME}
  .amdhsa_next_free_vgpr 512
  .amdhsa_next_free_sgpr 102
  .amdhsa_accum_offset 256
  .amdhsa_group_segment_fixed_size 0
  .amdhsa_kernarg_size 96
  .amdhsa_user_sgpr_count 2
  .amdhsa_user_sgpr_kernarg_segment_ptr 1
  .amdhsa_system_sgpr_workgroup_id_x 1
.end_amdhsa_kernel
"""

if __name__ == "__main__":
    cfg = Cfg()
    out = "interleave_layers__gqa_block_cached__glu_gated_reglu__decode.s"
    for arg in sys.argv[1:]:
        if arg.startswith("out="): out = arg[4:]
        else:
            k, val = arg.split("=", 1)
            cur = getattr(cfg, k)
            setattr(cfg, k, type(cur)(int(val)) if isinstance(cur, (bool, int)) else val)
    txt = gen(cfg)
    open(out, "w").write(txt)
    print("wrote", out)
```
